```python
import torch

def _softmax(x, axis=-1):
    return torch.softmax(x, dim=axis)
def _gelu(x):
    return torch.nn.functional.gelu(x, approximate="tanh")
def _silu(x):
    return torch.nn.functional.silu(x)
def _sigmoid(x):
    return torch.sigmoid(x)
def _layernorm(x, axis=-1, eps=1e-5):
    m = x.mean(dim=axis, keepdim=True)
    v = x.var(dim=axis, keepdim=True, unbiased=False)
    return (x - m) / torch.sqrt(v + eps)
def _scatter_add(tgt, idx, src, axis=0):
    return tgt.clone().index_add_(axis, idx, src)
def _segment_sum(src, seg, n):
    out = torch.zeros((n,) + src.shape[1:], dtype=src.dtype)
    return out.index_add_(0, seg, src)
def _pad(x, pw):
    flat = tuple(v for pair in reversed(pw) for v in pair)
    return torch.nn.functional.pad(x, flat)

kernel_name = 'standalone__mha_block_cached__near_ridge'

def setup_inputs():

    _w = (lambda a: (lambda t: t.to(torch.bfloat16) if t.is_floating_point() else t)(torch.as_tensor(a)))
    B, Sq, D = 8, 64, 1024
    H, Sk, Dh = 32, 64, 128
    return {
        "x": _w((lambda *s: torch.randn(*s, dtype=torch.bfloat16) * 0.8)(B, Sq, D)),
        "k_cache": _w((lambda *s: torch.randn(*s, dtype=torch.bfloat16) * 0.8)(B, H, Sk, Dh)),
        "v_cache": _w((lambda *s: torch.randn(*s, dtype=torch.bfloat16) * 0.05)(B, H, Sk, Dh)),
        "wq": _w((lambda *s: torch.randn(*s, dtype=torch.bfloat16) * 0.8)(D, H * Dh) * (D ** -0.5)),
        "wo": _w((lambda *s: torch.randn(*s, dtype=torch.bfloat16) * 0.05)(H * Dh, D) * ((H * Dh) ** -0.5)),
    }

def reference(x, k_cache, v_cache, wq, wo):
    B, Sq, D = x.shape
    H, Dh = 32, 128
    q = (lambda x, *d: x.permute(*d))((x @ wq).reshape(B, Sq, H, Dh), 0, 2, 1, 3)
    scores = torch.einsum("bhqd,bhkd->bhqk", q, k_cache) * (Dh ** -0.5)
    p = _softmax(scores, axis=-1)
    o = torch.einsum("bhqk,bhkd->bhqd", p, v_cache)
    return (lambda x, *d: x.permute(*d))(o, 0, 2, 1, 3).reshape(B, Sq, H * Dh) @ wo
```

```python
import re

_TRANS = ("v_exp_f32", "v_log_f32", "v_rcp_f32", "v_rsq_f32", "v_sqrt_f32", "v_sin_f32", "v_cos_f32")

def _regs(tok):
    t = tok.strip()
    t = t.lstrip('-')
    if t.startswith('|') and t.endswith('|'):
        t = t[1:-1]
    m = re.fullmatch(r'abs\((.*)\)', t)
    if m: t = m.group(1)
    m = re.fullmatch(r'([vsa])(\d+)', t)
    if m: return (m.group(1), int(m.group(2)), int(m.group(2)))
    m = re.fullmatch(r'([vsa])\[(\d+):(\d+)\]', t)
    if m: return (m.group(1), int(m.group(2)), int(m.group(3)))
    if t in ('vcc', 'exec', 'm0', 'vcc_lo', 'vcc_hi'):
        return (t, 0, 0)
    return None

class Inst:
    __slots__ = ("text", "mn", "ops", "mods", "vr", "vw", "sr", "sw", "kind", "comment")
    def __init__(self, text):
        self.text = text
        code = text.split(';')[0].strip()
        parts = code.split(None, 1)
        self.mn = parts[0]
        rest = parts[1] if len(parts) > 1 else ""
        ops = [o.strip() for o in rest.split(',')] if rest else []
        mods = []
        if ops:
            last = ops[-1].split()
            if last:
                ops[-1] = last[0]
                mods = last[1:]
        self.ops = ops; self.mods = mods
        self.vr = set(); self.vw = set(); self.sr = set(); self.sw = set()
        self.classify()

    def _add(self, tok, rd, wr):
        r = _regs(tok)
        if r is None: return
        k, lo, hi = r
        if k == 'v':
            for i in range(lo, hi + 1):
                if rd: self.vr.add(i)
                if wr: self.vw.add(i)
        elif k == 's':
            for i in range(lo, hi + 1):
                if rd: self.sr.add(i)
                if wr: self.sw.add(i)
        else:
            if rd: self.sr.add(k)
            if wr: self.sw.add(k)

    def classify(self):
        mn = self.mn; ops = self.ops
        if mn.startswith("v_mfma"):
            self.kind = "mfma"
            self._add(ops[0], False, True)
            for o in ops[1:]: self._add(o, True, False)
        elif mn.startswith("v_permlane") and "swap" in mn:
            self.kind = "valu"
            self._add(ops[0], True, True); self._add(ops[1], True, True)
        elif mn.startswith("v_readfirstlane") or mn.startswith("v_readlane"):
            self.kind = "valu"
            self._add(ops[0], False, True)
            for o in ops[1:]: self._add(o, True, False)
        elif mn.startswith("v_cmp"):
            self.kind = "valu"
            self._add(ops[0], False, True)
            for o in ops[1:]: self._add(o, True, False)
        elif mn.startswith("v_"):
            self.kind = "valu"
            rmw = mn.startswith("v_fmac") or mn.startswith("v_mac") or mn.startswith("v_dot2c")
            self._add(ops[0], rmw, True)
            for o in ops[1:]: self._add(o, True, False)
        elif mn.startswith("ds_read"):
            self.kind = "lds"
            self._add(ops[0], False, True); self._add(ops[1], True, False)
        elif mn.startswith("ds_write"):
            self.kind = "lds"
            for o in ops: self._add(o, True, False)
        elif mn.startswith("buffer_load") and "lds" in self.mods:
            self.kind = "dma"
            for o in ops: self._add(o, True, False)
            self.sr.add('m0')
        elif mn.startswith("buffer_load"):
            self.kind = "vmem"
            self._add(ops[0], False, True)
            for o in ops[1:]: self._add(o, True, False)
        elif mn.startswith("buffer_store"):
            self.kind = "vmem"
            for o in ops: self._add(o, True, False)
        elif mn.startswith("s_"):
            self.kind = "salu"
            nodst = ("s_cmp", "s_waitcnt", "s_barrier", "s_branch", "s_cbranch", "s_endpgm", "s_setprio", "s_nop", "s_sleep")
            if any(mn.startswith(x) for x in nodst):
                for o in ops: self._add(o, True, False)
            else:
                self._add(ops[0], False, True)
                for o in ops[1:]: self._add(o, True, False)
        else:
            raise ValueError("unknown instruction class: " + self.text)

    def is_trans(self):
        return any(self.mn.startswith(t) for t in _TRANS)

    def mfma_passes(self):
        if "32x32x16" in self.mn: return 8
        if "16x16x32" in self.mn: return 4
        raise ValueError("mfma passes unknown " + self.mn)

class Asm:
    def __init__(self):
        self.items = []
    def __call__(self, text):
        for line in text.strip().split('\n'):
            line = line.strip()
            if not line: continue
            if line.startswith(';') or line.endswith(':') or line.startswith('.'):
                self.items.append(line)
            else:
                self.items.append(Inst(line))
    def raw(self, text):
        self.items.append(text)
    def label(self, name):
        self.items.append(name + ":")
    def comment(self, c):
        self.items.append("; " + c)

    def finalize(self, verbose=False):
        out = []
        pos = 0
        vlast = {}
        srcc = {}
        svalu = {}
        m0pos = -100
        stdata = {}
        n_ins = 0
        for it in self.items:
            if isinstance(it, str):
                out.append(it); continue
            I = it
            if I.mn == "s_nop":
                out.append(I); pos += int(I.ops[0]) + 1; continue
            need = 0
            def req(ppos, n):
                nonlocal need
                gap = pos - ppos - 1
                if gap < n: need = max(need, n - gap)
            if I.kind == "mfma":
                d = _regs(I.ops[0]); c = _regs(I.ops[3])
                ab = set()
                for o in I.ops[1:3]:
                    r = _regs(o)
                    if r and r[0] == 'v': ab |= set(range(r[1], r[2] + 1))
                cset = set(range(c[1], c[2] + 1)) if (c and c[0] == 'v') else set()
                for r in I.vr:
                    if r in vlast:
                        p, k, dr = vlast[r]
                        if k in ("valu", "trans"): req(p, 2)
                        elif k.startswith("mfma"):
                            ps = int(k[4:])
                            if r in ab:
                                req(p, {4: 8, 8: 12}[ps])
                            if r in cset:
                                if dr == (c[1], c[2]) and ps == I.mfma_passes(): pass
                                else: req(p, {4: 6, 8: 10}[ps])
            else:
                touched = set(I.vr) | set(I.vw)
                for r in touched:
                    if r in vlast:
                        p, k, dr = vlast[r]
                        if k.startswith("mfma"):
                            ps = int(k[4:])
                            req(p, {4: 8, 8: 12}[ps])
                for r in I.vr:
                    if r in vlast:
                        p, k, dr = vlast[r]
                        if I.kind == "valu":
                            if k == "trans" and not I.is_trans(): req(p, 1)
                            if k in ("valu", "trans"):
                                if I.mn.startswith("v_permlane"): req(p, 2)
                                if I.mn.startswith("v_readfirstlane") or I.mn.startswith("v_readlane"): req(p, 1)
                                if "dpp" in I.mn or any(m.startswith("row_") or m.startswith("quad_perm") for m in I.mods): req(p, 2)
                if I.kind == "valu":
                    for r in I.vw:
                        if r in srcc:
                            p, ps = srcc[r]; req(p, {4: 3, 8: 7}[ps])
                        if r in stdata: req(stdata[r], 2)
                else:
                    for r in I.vw:
                        if r in stdata: req(stdata[r], 1)
            for s in I.sr:
                if s in svalu:
                    if I.kind in ("valu", "mfma"): req(svalu[s], 2)
                    elif I.kind in ("vmem", "dma"): req(svalu[s], 5)
                    elif I.kind == "salu": req(svalu[s], 1)
            if I.kind == "dma": req(m0pos, 1)
            if need > 0:
                rem = need
                while rem > 0:
                    n = min(rem, 16)
                    nop = Inst("s_nop %d" % (n - 1))
                    out.append(nop); pos += n; rem -= n; n_ins += 1
                if verbose: print("  hazard nop %d before: %s" % (need, I.text))
            out.append(I)
            if I.kind == "mfma":
                d = _regs(I.ops[0]); ps = I.mfma_passes()
                for r in range(d[1], d[2] + 1): vlast[r] = (pos, "mfma%d" % ps, (d[1], d[2]))
                c = _regs(I.ops[3])
                if c and c[0] == 'v':
                    for r in range(c[1], c[2] + 1): srcc[r] = (pos, ps)
            else:
                for r in I.vw:
                    if I.kind == "valu": vlast[r] = (pos, "trans" if I.is_trans() else "valu", None)
                    else: vlast[r] = (pos, "mem", None)
                if I.kind == "valu":
                    for s in I.sw: svalu[s] = pos
                else:
                    for s in I.sw:
                        if s in svalu: del svalu[s]
                if 'm0' in I.sw: m0pos = pos
                if I.mn.startswith("buffer_store_dwordx4") or I.mn.startswith("buffer_store_dwordx3"):
                    r = _regs(I.ops[0])
                    for q in range(r[1], r[2] + 1): stdata[q] = pos
            pos += 1
        self.out = out
        return n_ins

    def text(self):
        lines = []
        for it in self.out:
            if isinstance(it, str):
                lines.append(it)
            else:
                lines.append("    " + it.text)
        return "\n".join(lines) + "\n"

    def max_vgpr(self):
        m = 0
        for it in self.items:
            if isinstance(it, Inst):
                for r in (it.vr | it.vw): m = max(m, r)
        return m

def vr(n, c=1):
    return "v%d" % n if c == 1 else "v[%d:%d]" % (n, n + c - 1)
def sr(n, c=1):
    return "s%d" % n if c == 1 else "s[%d:%d]" % (n, n + c - 1)
```

```python
import struct, sys, math
from asmlib import Asm, vr, sr

def f32hex(x):
    return "0x%08x" % struct.unpack("<I", struct.pack("<f", x))[0]

NST = 16
SLOT = 24576
XO = 0
WOF = 8192
P_OFF = 4 << 20
LOG2 = {2048: 11, 8192: 13}

class Cfg:
    rotate = True
    R1 = 5
    R2 = 6
    debug_q = False

def gen_gemm(kind, cfg):
    A = Asm()
    k1 = kind == 'k1'
    name = "mha_k1_kernel" if k1 else "mha_k2_kernel"
    LDX, LDW = (2048, 8192) if k1 else (8192, 2048)
    R = cfg.R1 if k1 else cfg.R2
    RING = 0
    K_BASE = RING + R * SLOT
    V_BASE = K_BASE + 16384
    LDS = (V_BASE + 16384) if k1 else K_BASE
    Q_BASE = RING + 1 * SLOT
    assert (15 % R) != 1

    A.raw(".globl %s\n.p2align 8\n.type %s,@function\n%s:" % (name, name, name))
    A("s_cmp_ge_u32 s2, 256")
    A("s_cbranch_scc1 %s_end" % name)
    A("s_load_dwordx16 s[16:31], s[0:1], 0")
    A("v_lshrrev_b32 v1, 6, v0")
    A("v_and_b32 v0, 63, v0")
    A("s_and_b32 s4, s2, 7            ; xcd")
    A("v_readfirstlane_b32 s3, v1")
    A("s_lshr_b32 s5, s2, 3")
    A("s_and_b32 s5, s5, 3            ; q4")
    A("s_lshr_b32 s6, s2, 5           ; b")
    if k1:
        A("s_lshl_b32 s7, s4, 2")
        A("s_add_u32 s7, s7, s5           ; h = 4*xcd + q4")
    else:
        A("s_lshr_b32 s8, s4, 1           ; ks")
        A("s_and_b32 s7, s4, 1")
        A("s_lshl_b32 s7, s7, 2")
        A("s_add_u32 s7, s7, s5")
    if cfg.rotate:
        A("s_lshl_b32 s9, s6, 1")
        A("s_lshl_b32 s10, s5, 2")
        A("s_add_u32 s9, s9, s10")
        A("s_and_b32 s9, s9, 15")
    else:
        A("s_mov_b32 s9, 0")
    A("s_waitcnt lgkmcnt(0)")
    def srd(d, lo, size):
        A("s_mov_b32 s%d, s%d" % (d, lo))
        A("s_mov_b32 s%d, s%d" % (d + 1, lo + 1))
        A("s_mov_b32 s%d, 0x%x" % (d + 2, size))
        A("s_mov_b32 s%d, 0x00020000" % (d + 3))
    if k1:
        srd(32, 16, 1 << 20)
        srd(36, 22, 8 << 20)
        srd(40, 18, 4 << 20)
        srd(44, 20, 4 << 20)
        srd(48, 30, 4 << 20)
    else:
        srd(32, 30, 4 << 20)
        srd(36, 24, 8 << 20)
        srd(48, 30, 12 << 20)
    A("s_cmp_ge_u32 s3, 4")
    A("s_cbranch_scc1 %s_prod" % name)

    vL31, vHF, vI16, vG, vG16, vR, vC4 = 1, 2, 3, 4, 5, 6, 7
    A("v_and_b32 v1, 31, v0")
    A("v_lshrrev_b32 v2, 5, v0")
    A("v_and_b32 v3, 15, v0")
    A("v_lshrrev_b32 v4, 4, v0")
    A("v_and_b32 v5, 1, v4")
    A("v_lshrrev_b32 v6, 2, v3")
    A("v_and_b32 v7, 3, v3")
    A("s_and_b32 s10, s3, 1           ; wd")
    A("s_lshr_b32 s11, s3, 1          ; wr")
    vX = [16, 17, 18, 19]; vW = [20, 21]
    A("v_bfe_u32 v8, v1, 1, 3")
    A("v_xor_b32 v8, v2, v8")
    A("v_lshlrev_b32 v8, 4, v8")
    A("v_lshlrev_b32 v9, 7, v1")
    A("s_lshl_b32 s12, s11, 12        ; wr*4096")
    A("s_add_u32 s12, s12, %d" % (RING + XO))
    A("v_add_u32 v9, s12, v9")
    A("v_add_u32 v16, v9, v8")
    A("v_xor_b32 v17, 32, v16")
    A("v_xor_b32 v18, 64, v16")
    A("v_xor_b32 v19, 0x60, v16")
    A("s_lshl_b32 s13, s10, 1         ; 2*wd")
    A("v_xor_b32 v10, s13, v6")
    A("v_lshlrev_b32 v10, 6, v10")
    A("v_lshlrev_b32 v11, 11, v2")
    A("v_lshl_add_u32 v11, v6, 8, v11")
    A("v_add_u32 v10, v10, v11")
    A("v_lshl_add_u32 v10, v5, 5, v10")
    A("v_lshl_add_u32 v10, v7, 3, v10")
    A("v_add_u32 v20, %d, v10" % (RING + WOF))
    A("v_xor_b32 v21, 64, v20")
    setA = dict(a0=24, a1=28, b=32)
    setB = dict(a0=36, a1=40, b=44)
    acc = [48, 64]
    for i in range(48, 80): A("v_mov_b32 v%d, 0" % i)
    for i in range(36, 48): A("v_mov_b32 v%d, 0" % i)
    A("s_mov_b32 s60, 0")
    A("s_mov_b32 s61, 0")
    A("s_mov_b32 s62, %d" % SLOT)
    A("s_mov_b32 s63, %d" % (-(R - 1) * SLOT & 0xffffffff))

    def reads(ks, S):
        A("ds_read_b128 %s, v%d" % (vr(S['b'], 4), vX[ks]))
        A("ds_read_b64_tr_b16 %s, v%d offset:%d" % (vr(S['a0'], 2), vW[0], ks * 4096))
        A("ds_read_b64_tr_b16 %s, v%d offset:%d" % (vr(S['a0'] + 2, 2), vW[0], ks * 4096 + 1024))
        A("ds_read_b64_tr_b16 %s, v%d offset:%d" % (vr(S['a1'], 2), vW[1], ks * 4096))
        A("ds_read_b64_tr_b16 %s, v%d offset:%d" % (vr(S['a1'] + 2, 2), vW[1], ks * 4096 + 1024))
    def mfma(S):
        A("v_mfma_f32_32x32x16_bf16 %s, %s, %s, %s" % (vr(acc[0], 16), vr(S['a0'], 4), vr(S['b'], 4), vr(acc[0], 16)))
        A("v_mfma_f32_32x32x16_bf16 %s, %s, %s, %s" % (vr(acc[1], 16), vr(S['a1'], 4), vr(S['b'], 4), vr(acc[1], 16)))

    A.label("%s_cons" % name)
    A("s_barrier")
    reads(0, setA)
    mfma(setB)
    reads(1, setB)
    A("s_waitcnt lgkmcnt(5)")
    mfma(setA)
    reads(2, setA)
    A("s_waitcnt lgkmcnt(5)")
    mfma(setB)
    reads(3, setB)
    A("s_add_u32 s60, s60, 1")
    A("s_cmp_eq_u32 s60, %d" % R)
    A("s_cselect_b32 s59, s63, s62")
    A("s_cselect_b32 s60, 0, s60")
    for r_ in vX + vW:
        A("v_add_u32 v%d, s59, v%d" % (r_, r_))
    A("s_waitcnt lgkmcnt(5)")
    mfma(setA)
    A("s_waitcnt lgkmcnt(0)")
    A("s_add_u32 s61, s61, 1")
    A("s_cmp_lt_u32 s61, %d" % NST)
    A("s_cbranch_scc1 %s_cons" % name)
    mfma(setB)

    if k1:
        A.comment("---- q -> LDS (bf16, swizzled)")
        A("v_lshlrev_b32 v8, 8, v1")
        A("v_lshl_add_u32 v8, v2, 3, v8")
        A("v_lshl_add_u32 v8, v3, 4, v8")
        A("s_lshl_b32 s12, s11, 13        ; wr*32*256")
        A("s_add_u32 s12, s12, %d" % Q_BASE)
        A("v_add_u32 v8, s12, v8")
        A("s_lshl_b32 s13, s10, 7         ; (8*wd)<<4")
        A("v_xor_b32 v8, s13, v8")
        tmp = 80
        for tt in range(2):
            for c in range(4):
                t0 = tmp + 2 * (tt * 4 + c)
                A("v_cvt_pk_bf16_f32 v%d, v%d, v%d" % (t0, acc[tt] + 4 * c, acc[tt] + 4 * c + 1))
                A("v_cvt_pk_bf16_f32 v%d, v%d, v%d" % (t0 + 1, acc[tt] + 4 * c + 2, acc[tt] + 4 * c + 3))
        for tt in range(2):
            for c in range(4):
                t0 = tmp + 2 * (tt * 4 + c)
                A("v_xor_b32 v9, 0x%x, v8" % ((4 * tt + c) << 4))
                A("ds_write_b64 v9, %s" % vr(t0, 2))
        A("s_waitcnt lgkmcnt(0)")
        A("s_barrier")
        if cfg.debug_q:
            pass
        vA = [96, 97, 98, 99]
        vQ = [100, 101, 102, 103]
        vK = [104, 105, 106, 107]
        vV = [108 + i for i in range(8)]
        qf = 116
        kf = 132
        sacc = 196
        oacc = 212
        pf = 24
        ee = 32
        tm = 48
        A("v_xor_b32 v8, v4, v3")
        A("v_lshlrev_b32 v8, 4, v8")
        A("v_lshl_add_u32 v%d, v3, 8, v8" % vA[0])
        for s in range(1, 4): A("v_xor_b32 v%d, 0x%x, v%d" % (vA[s], s << 6, vA[0]))
        A("s_lshl_b32 s12, s3, 12")
        A("s_add_u32 s12, s12, %d         ; Q_BASE + 4096*w" % Q_BASE)
        for s in range(4): A("v_add_u32 v%d, s12, v%d" % (vQ[s], vA[s]))
        for s in range(4): A("v_add_u32 v%d, 0x%x, v%d" % (vK[s], K_BASE, vA[s]))
        A("v_lshl_add_u32 v8, v4, 2, v6      ; 4g + r")
        A("v_lshlrev_b32 v8, 8, v8")
        A("v_lshl_add_u32 v9, v5, 2, v6      ; kk = 4*(g&1) + r")
        A("v_lshl_add_u32 v8, v9, 5, v8")
        A("v_lshl_add_u32 v8, v7, 3, v8")
        A("v_add_u32 v%d, 0x%x, v8" % (vV[0], V_BASE))
        for d in range(1, 8): A("v_xor_b32 v%d, 0x%x, v%d" % (vV[d], d << 5, vV[0]))
        for s in range(4):
            A("ds_read_b128 %s, v%d" % (vr(qf + 4 * s, 4), vQ[s]))
            for T in range(4):
                A("ds_read_b128 %s, v%d offset:%d" % (vr(kf + 16 * s + 4 * T, 4), vK[s], 4096 * T))
        for s in range(4):
            for T in range(4):
                n_after = 18 - 5 * s - T
                if s == 0 and T == 0: A("s_waitcnt lgkmcnt(%d)" % min(15, n_after))
                elif n_after < 15: A("s_waitcnt lgkmcnt(%d)" % n_after)
                c_in = "0" if s == 0 else vr(sacc + 4 * T, 4)
                A("v_mfma_f32_16x16x32_bf16 %s, %s, %s, %s" % (vr(sacc + 4 * T, 4), vr(kf + 16 * s + 4 * T, 4), vr(qf + 4 * s, 4), c_in))
        for u in range(2):
            for d in range(8):
                base = kf + (u * 8 + d) * 4
                A("ds_read_b64_tr_b16 %s, v%d offset:%d" % (vr(base, 2), vV[d], 8192 * u))
                A("ds_read_b64_tr_b16 %s, v%d offset:%d" % (vr(base + 2, 2), vV[d], 8192 * u + 4096))
        S = [sacc + i for i in range(16)]
        A("v_max3_f32 v%d, v%d, v%d, v%d" % (tm, S[0], S[1], S[2]))
        A("v_max3_f32 v%d, v%d, v%d, v%d" % (tm + 1, S[3], S[4], S[5]))
        A("v_max3_f32 v%d, v%d, v%d, v%d" % (tm + 2, S[6], S[7], S[8]))
        A("v_max3_f32 v%d, v%d, v%d, v%d" % (tm + 3, S[9], S[10], S[11]))
        A("v_max3_f32 v%d, v%d, v%d, v%d" % (tm + 4, S[12], S[13], S[14]))
        A("v_max3_f32 v%d, v%d, v%d, v%d" % (tm, tm, tm + 1, S[15]))
        A("v_max3_f32 v%d, v%d, v%d, v%d" % (tm + 2, tm + 2, tm + 3, tm + 4))
        A("v_max_f32 v%d, v%d, v%d" % (tm, tm, tm + 2))
        def xreduce(reg, tmpr, op):
            A("v_mov_b32 v%d, v%d" % (tmpr, reg))
            A("v_permlane32_swap_b32 v%d, v%d" % (reg, tmpr))
            A("%s v%d, v%d, v%d" % (op, reg, reg, tmpr))
            A("v_mov_b32 v%d, v%d" % (tmpr, reg))
            A("v_permlane16_swap_b32 v%d, v%d" % (reg, tmpr))
            A("%s v%d, v%d, v%d" % (op, reg, reg, tmpr))
        xreduce(tm, tm + 1, "v_max_f32")
        CEXP = math.log2(math.e) / math.sqrt(128.0)
        A("s_mov_b32 s14, %s" % f32hex(CEXP))
        A("v_mul_f32 v%d, s14, v%d" % (tm + 1, tm))
        for i in range(16):
            A("v_fma_f32 v%d, v%d, s14, -v%d" % (ee + i, S[i], tm + 1))
        for i in range(16):
            A("v_exp_f32 v%d, v%d" % (ee + i, ee + i))
        for T in range(4):
            A("v_cvt_pk_bf16_f32 v%d, v%d, v%d" % (pf + 2 * T, ee + 4 * T, ee + 4 * T + 1))
            A("v_cvt_pk_bf16_f32 v%d, v%d, v%d" % (pf + 2 * T + 1, ee + 4 * T + 2, ee + 4 * T + 3))
        A("s_waitcnt lgkmcnt(0)")
        for u in range(2):
            for d in range(8):
                c_in = "0" if u == 0 else vr(oacc + 4 * d, 4)
                A("v_mfma_f32_16x16x32_bf16 %s, %s, %s, %s" % (vr(oacc + 4 * d, 4), vr(kf + (u * 8 + d) * 4, 4), vr(pf + 4 * u, 4), c_in))
        sm = tm + 4
        A("v_add_f32 v%d, v%d, v%d" % (sm, ee, ee + 1))
        for i in range(2, 16): A("v_add_f32 v%d, v%d, v%d" % (sm, sm, ee + i))
        xreduce(sm, sm + 1, "v_add_f32")
        A("v_rcp_f32 v%d, v%d" % (sm + 2, sm))
        A("v_lshlrev_b32 v8, 13, v3")
        A("v_lshl_add_u32 v8, v4, 3, v8")
        A("s_lshl_b32 s12, s6, 19         ; b*64*8192")
        A("s_lshl_b32 s13, s3, 17         ; 16w*8192")
        A("s_add_u32 s12, s12, s13")
        A("s_lshl_b32 s13, s7, 8          ; h*256")
        A("s_add_u32 s12, s12, s13")
        ot = 64
        for d in range(8):
            for r_ in range(4):
                A("v_mul_f32 v%d, v%d, v%d" % (oacc + 4 * d + r_, oacc + 4 * d + r_, sm + 2))
            A("v_cvt_pk_bf16_f32 v%d, v%d, v%d" % (ot + 2 * d, oacc + 4 * d, oacc + 4 * d + 1))
            A("v_cvt_pk_bf16_f32 v%d, v%d, v%d" % (ot + 2 * d + 1, oacc + 4 * d + 2, oacc + 4 * d + 3))
            A("buffer_store_dwordx2 %s, v8, s[48:51], s12 offen offset:%d" % (vr(ot + 2 * d, 2), 32 * d))
        A("s_endpgm")
    else:
        A.comment("---- store fp32 partial tile in fragment order")
        A("s_lshl_b32 s12, s6, 3")
        A("s_add_u32 s12, s12, s7")
        A("s_lshl_b32 s12, s12, 2")
        A("s_add_u32 s12, s12, s3")
        A("s_lshl_b32 s12, s12, 13")
        A("s_lshl_b32 s13, s8, 21")
        A("s_add_u32 s12, s12, s13")
        A("s_add_u32 s12, s12, 0x%x" % P_OFF)
        A("s_add_u32 s13, s12, 4096")
        A("v_lshlrev_b32 v8, 4, v0")
        for tt in range(2):
            for c in range(4):
                A("buffer_store_dwordx4 %s, v8, s[48:51], %s offen offset:%d" % (vr(acc[tt] + 4 * c, 4), "s12" if tt == 0 else "s13", 1024 * c))
        A("s_endpgm")

    A.label("%s_prod" % name)
    A("s_sub_u32 s63, s3, 4           ; p")
    A("v_lshrrev_b32 v1, 3, v0")
    A("v_lshrrev_b32 v2, 4, v0")
    A("v_and_b32 v3, 7, v0")
    A("v_and_b32 v4, 15, v0")
    vx = [10, 11]; vw = [12, 13, 14, 15]
    A("s_lshl_b32 s10, s63, 4         ; 16p")
    A("v_xor_b32 v5, v3, v2")
    A("v_lshlrev_b32 v5, 4, v5")
    A("v_add_u32 v6, s10, v1")
    A("v_lshlrev_b32 v6, %d, v6" % LOG2[LDX])
    A("v_add_u32 v10, v6, v5")
    A("v_xor_b32 v7, 64, v5")
    A("v_add_u32 v11, v6, v7")
    A("v_add_u32 v11, 0x%x, v11" % (8 * LDX - 1024))
    A("v_lshlrev_b32 v8, 2, v2")
    A("v_xor_b32 v8, v4, v8")
    A("v_lshlrev_b32 v8, 4, v8")
    A("v_add_u32 v9, s10, v2")
    A("v_lshlrev_b32 v9, %d, v9" % LOG2[LDW])
    A("v_add_u32 v12, v9, v8")
    for jj in range(1, 4):
        A("v_add_u32 v%d, 0x%x, v12" % (vw[jj], jj * (4 * LDW - 1024)))
    A("s_lshl_b32 s61, s63, 11        ; 2048p")
    A("s_lshl_b32 s62, s63, 12")
    A("s_add_u32 s62, s62, %d         ; 8192 + 4096p" % WOF)
    if k1:
        A("s_lshl_b32 s56, s6, 17         ; xoff0 = b*64*2048")
        A("s_lshl_b32 s57, s7, 8          ; woff0 = h*256")
        A("s_lshl_b32 s11, s6, 5")
        A("s_add_u32 s11, s11, s7")
        A("s_lshl_b32 s11, s11, 14        ; (b*32+h)*16384")
        A("s_lshl_b32 s12, s63, 12        ; 4096p")
        A("v_xor_b32 v16, v4, v2")
        A("v_lshlrev_b32 v16, 4, v16")
        A("v_lshl_add_u32 v16, v2, 8, v16")
        A("v_add_u32 v16, s12, v16        ; v_kbase")
        A("s_add_u32 s13, s12, %d" % K_BASE)
        A("s_mov_b32 m0, s13")
        for jj in range(4):
            if jj: A("v_xor_b32 v17, 0x%x, v16" % (jj << 6))
            A("buffer_load_dwordx4 v%d, s[40:43], s11 offen offset:%d lds" % (16 if jj == 0 else 17, 1024 * jj))
        A("v_lshlrev_b32 v18, 1, v2")
        A("v_xor_b32 v18, v4, v18")
        A("v_lshlrev_b32 v18, 4, v18")
        A("v_lshl_add_u32 v18, v2, 8, v18")
        A("v_add_u32 v18, s12, v18        ; v_vbase")
        A("v_xor_b32 v19, 0x80, v18")
        A("s_add_u32 s13, s12, %d" % V_BASE)
        A("s_mov_b32 m0, s13")
        for jj in range(4):
            A("buffer_load_dwordx4 v%d, s[44:47], s11 offen offset:%d lds" % (18 + (jj & 1), 1024 * jj))
    else:
        A("s_lshl_b32 s56, s6, 19         ; b*64*8192")
        A("s_lshl_b32 s10, s8, 11         ; ks*2048")
        A("s_add_u32 s56, s56, s10")
        A("s_lshl_b32 s57, s8, 21         ; ks*1024*2048")
        A("s_lshl_b32 s10, s7, 8          ; nt*256")
        A("s_add_u32 s57, s57, s10")
    A("s_mov_b32 s52, s9              ; kst")
    A("s_mov_b32 s55, %d              ; slot abs" % RING)

    def issue_stage(tag):
        A("s_lshl_b32 s53, s52, 7")
        A("s_add_u32 s53, s53, s56        ; sx")
        A("s_lshl_b32 s54, s52, %d" % (6 + LOG2[LDW]))
        A("s_add_u32 s54, s54, s57        ; sw")
        A("s_add_u32 m0, s55, s61")
        A("s_add_u32 s52, s52, 1")
        for jj in range(2):
            A("buffer_load_dwordx4 v%d, s[32:35], s53 offen offset:%d lds" % (vx[jj], 1024 * jj))
        A("s_add_u32 m0, s55, s62")
        A("s_and_b32 s52, s52, 15")
        for jj in range(4):
            A("buffer_load_dwordx4 v%d, s[36:39], s54 offen offset:%d lds" % (vw[jj], 1024 * jj))
        A("s_add_u32 s55, s55, %d" % SLOT)
        A("s_cmp_ge_u32 s55, %d" % (RING + R * SLOT))
        A("s_cselect_b32 s55, %d, s55" % RING)

    for t in range(R - 1):
        issue_stage("pro%d" % t)
    n_main = NST - (R - 1)
    A("s_mov_b32 s58, 0")
    A.label("%s_ploop" % name)
    A("s_waitcnt vmcnt(%d)" % (6 * (R - 2)))
    A("s_barrier")
    issue_stage("main")
    A("s_add_u32 s58, s58, 1")
    A("s_cmp_lt_u32 s58, %d" % n_main)
    A("s_cbranch_scc1 %s_ploop" % name)
    for t in range(n_main, NST):
        n_after = min(R - 2, NST - 1 - t)
        A("s_waitcnt vmcnt(%d)" % (6 * n_after))
        A("s_barrier")
    A.label("%s_end" % name)
    A("s_endpgm")
    n = A.finalize(verbose=False)
    return A.text(), A.max_vgpr() + 1, LDS, name

def gen_k3():
    A = Asm()
    name = "mha_k3_kernel"
    A.raw(".globl %s\n.p2align 8\n.type %s,@function\n%s:" % (name, name, name))
    A("s_cmp_ge_u32 s2, 256")
    A("s_cbranch_scc1 %s_end" % name)
    A("s_load_dwordx2 s[4:5], s[0:1], 40")
    A("s_load_dwordx2 s[6:7], s[0:1], 56")
    A("v_lshrrev_b32 v1, 6, v0")
    A("v_and_b32 v0, 63, v0")
    A("s_lshr_b32 s8, s2, 5           ; b")
    A("v_readfirstlane_b32 s3, v1     ; wave v")
    A("s_lshr_b32 s9, s2, 2")
    A("s_and_b32 s9, s9, 7            ; nt")
    A("s_and_b32 s10, s2, 3           ; w")
    A("s_waitcnt lgkmcnt(0)")
    A("s_mov_b32 s12, s4"); A("s_mov_b32 s13, s5"); A("s_mov_b32 s14, 0x100000"); A("s_mov_b32 s15, 0x00020000")
    A("s_mov_b32 s16, s6"); A("s_mov_b32 s17, s7"); A("s_mov_b32 s18, 0xc00000"); A("s_mov_b32 s19, 0x00020000")
    A("s_lshl_b32 s20, s2, 13")
    A("s_add_u32 s20, s20, 0x%x" % P_OFF)
    A("s_add_u32 s21, s20, 0x200000")
    A("s_add_u32 s22, s20, 0x400000")
    A("s_add_u32 s23, s20, 0x600000")
    A("s_lshl_b32 s24, s3, 11         ; v*2048")
    A("v_lshlrev_b32 v2, 4, v0")
    A("v_add_u32 v2, s24, v2")
    for ii in range(2):
        for ks in range(4):
            A("buffer_load_dwordx4 %s, v2, s[16:19], s%d offen offset:%d" % (vr(8 + 16 * ii + 4 * ks, 4), 20 + ks, 1024 * ii))
    A("v_and_b32 v3, 31, v0")
    A("v_lshrrev_b32 v4, 5, v0")
    A("v_lshlrev_b32 v3, 11, v3")
    A("v_lshl_add_u32 v3, v4, 3, v3")
    A("s_lshl_b32 s25, s8, 17         ; b*64*2048")
    A("s_lshr_b32 s26, s10, 1")
    A("s_lshl_b32 s26, s26, 16        ; 32*2048")
    A("s_add_u32 s25, s25, s26")
    A("s_lshl_b32 s26, s9, 8          ; nt*256")
    A("s_add_u32 s25, s25, s26")
    A("s_and_b32 s26, s10, 1")
    A("s_lshl_b32 s26, s26, 7         ; 2*(w&1)*64")
    A("s_add_u32 s25, s25, s26")
    A("s_lshr_b32 s26, s3, 1")
    A("s_lshl_b32 s26, s26, 6         ; tt*64")
    A("s_add_u32 s25, s25, s26")
    A("s_and_b32 s26, s3, 1")
    A("s_lshl_b32 s26, s26, 5         ; 2*(v&1)*16")
    A("s_add_u32 s25, s25, s26")
    for ii in range(2):
        b0 = 8 + 16 * ii
        A("s_waitcnt vmcnt(%d)" % (4 if ii == 0 else 0))
        for e in range(4):
            A("v_add_f32 v%d, v%d, v%d" % (b0 + e, b0 + e, b0 + 4 + e))
            A("v_add_f32 v%d, v%d, v%d" % (b0 + e, b0 + e, b0 + 8 + e))
            A("v_add_f32 v%d, v%d, v%d" % (b0 + e, b0 + e, b0 + 12 + e))
        A("v_cvt_pk_bf16_f32 v%d, v%d, v%d" % (40 + 2 * ii, b0, b0 + 1))
        A("v_cvt_pk_bf16_f32 v%d, v%d, v%d" % (41 + 2 * ii, b0 + 2, b0 + 3))
        A("buffer_store_dwordx2 %s, v3, s[12:15], s25 offen offset:%d" % (vr(40 + 2 * ii, 2), 16 * ii))
    A.label("%s_end" % name)
    A("s_endpgm")
    A.finalize()
    return A.text(), A.max_vgpr() + 1, 0, name

def kd(name, nv, ns=102):
    nv8 = (nv + 7) // 8 * 8
    return """.section .rodata,"a"
.p2align 6
.amdhsa_kernel %s
  .amdhsa_next_free_vgpr %d
  .amdhsa_next_free_sgpr %d
  .amdhsa_accum_offset %d
  .amdhsa_group_segment_fixed_size 0
  .amdhsa_kernarg_size 64
  .amdhsa_user_sgpr_count 2
  .amdhsa_user_sgpr_kernarg_segment_ptr 1
  .amdhsa_system_sgpr_workgroup_id_x 1
.end_amdhsa_kernel
""" % (name, nv8, ns, nv8)

def main(out_path, cfg, only=None):
    t1, nv1, lds1, n1 = gen_gemm('k1', cfg)
    t2, nv2, lds2, n2 = gen_gemm('k2', cfg)
    t3, nv3, lds3, n3 = gen_k3()
    hdr = open("standalone__mha_block_cached__near_ridge.s.ref").read().split("; Override launch")[0]
    s = hdr
    s += "; @launch kernel=%s grid=(256,1,1) block=(512,1,1) lds=%d\n" % (n1, lds1)
    s += "; @launch kernel=%s grid=(256,1,1) block=(512,1,1) lds=%d\n" % (n2, lds2)
    s += "; @launch kernel=%s grid=(256,1,1) block=(256,1,1) lds=0\n" % n3
    s += '.amdgcn_target "amdgcn-amd-amdhsa--gfx950"\n.text\n'
    s += t1 + t2 + t3
    s += kd(n1, nv1) + kd(n2, nv2) + kd(n3, nv3)
    open(out_path, "w").write(s)
    print("generated", out_path, "vgprs", nv1, nv2, nv3, "lds", lds1, lds2)

if __name__ == "__main__":
    cfg = Cfg()
    out = sys.argv[1] if len(sys.argv) > 1 else "standalone__mha_block_cached__near_ridge.s"
    for a in sys.argv[2:]:
        k, v = a.split('=')
        setattr(cfg, k, type(getattr(cfg, k))(int(v)))
    main(out, cfg)
```
